```python
import torch

def _softmax(x, axis=-1):
    return torch.softmax(x, dim=axis)
def _gelu(x):
    return torch.nn.functional.gelu(x, approximate="tanh")
def _silu(x):
    return torch.nn.functional.silu(x)
def _sigmoid(x):
    return torch.sigmoid(x)
def _layernorm(x, axis=-1, eps=1e-5):
    m = x.mean(dim=axis, keepdim=True)
    v = x.var(dim=axis, keepdim=True, unbiased=False)
    return (x - m) / torch.sqrt(v + eps)
def _scatter_add(tgt, idx, src, axis=0):
    return tgt.clone().index_add_(axis, idx, src)
def _segment_sum(src, seg, n):
    out = torch.zeros((n,) + src.shape[1:], dtype=src.dtype)
    return out.index_add_(0, seg, src)
def _pad(x, pw):
    flat = tuple(v for pair in reversed(pw) for v in pair)
    return torch.nn.functional.pad(x, flat)

kernel_name = 'standalone__weight_only_int_omniquant__prompt'

def setup_inputs():

    _w = (lambda a: (lambda t: t.to(torch.bfloat16) if t.is_floating_point() else t)(torch.as_tensor(a)))
    B, S, D, F = 1, 2048, 576, 4608
    bits = 8
    G = 64 if 64 > 0 else D
    D = (D // G) * G
    ng = D // G
    qmax = (1 << bits) - 1
    qw = torch.randint(0, qmax + 1, (D, F)).to(torch.int32)
    scales = (torch.abs((lambda *s: torch.randn(*s, dtype=torch.bfloat16) * 0.05)(ng, F)) * 0.05 + 0.01).to(float)
    zeros = torch.randint(0, qmax + 1, (ng, F)).to(float)
    act_scale = (torch.abs((lambda *s: torch.randn(*s, dtype=torch.bfloat16) * 0.05)(D)) * 0.5 + 0.5).to(float)
    return {
        "x": _w((lambda *s: torch.randn(*s, dtype=torch.bfloat16) * 0.05)(B, S, D)),
        "qw": _w(qw),
        "scales": _w(scales),
        "zeros": _w(zeros),
        "act_scale": _w(act_scale),
    }

def reference(x, qw, scales, zeros, act_scale):
    B, S, D = x.shape
    ng, F = scales.shape
    G = D // ng
    s = (lambda x, n, axis: torch.repeat_interleave(x, n, dim=axis))(scales, G, axis=0)
    z = (lambda x, n, axis: torch.repeat_interleave(x, n, dim=axis))(zeros, G, axis=0)
    w = ((lambda x, dt: x.to(dt))(qw, x.dtype) - z) * s
    xs = x * (lambda x, dt: x.to(dt))(act_scale, x.dtype)
    return torch.einsum("bsd,df->bsf", xs, w)
```

```python
KN = "standalone__weight_only_int_omniquant__prompt_kernel"
HEADER = """; Kernarg layout (64 bytes, ptrs only, base s[0:1]):
"""
class Asm:
    def __init__(self):
        self.l = []
    def __call__(self, s):
        for ln in s.split("\n"):
            self.l.append(ln)
    def text(self):
        return "\n".join(self.l) + "\n"
def kernel_file(body, grid, block, lds, nvgpr, accum, nsgpr=102, extra_kd="", name=KN, comments=""):
    return (HEADER + comments + f"; @launch grid=({grid},1,1) block=({block},1,1) lds={lds}\n"
      '.amdgcn_target "amdgcn-amd-amdhsa--gfx950"\n.text\n'
      f".globl {name}\n.p2align 8\n.type {name},@function\n{name}:\n" + body +
      '.section .rodata,"a"\n.p2align 6\n'
      f".amdhsa_kernel {name}\n  .amdhsa_next_free_vgpr {nvgpr}\n  .amdhsa_next_free_sgpr {nsgpr}\n  .amdhsa_accum_offset {accum}\n"
      "  .amdhsa_group_segment_fixed_size 0\n  .amdhsa_kernarg_size 64\n  .amdhsa_user_sgpr_count 2\n  .amdhsa_user_sgpr_kernarg_segment_ptr 1\n"
      "  .amdhsa_system_sgpr_workgroup_id_x 1\n" + extra_kd + ".end_amdhsa_kernel\n")
def vr(b, n=1, k="v"):
    return f"{k}{b}" if n == 1 else f"{k}[{b}:{b+n-1}]"
def ar(b, n=1): return vr(b, n, "a")
def sr(b, n=1): return vr(b, n, "s")
def srd(a, d, p, nbytes):
    a(f"s_mov_b32 s{d}, s{p}\ns_mov_b32 s{d+1}, s{p+1}\ns_mov_b32 s{d+2}, {nbytes}\ns_mov_b32 s{d+3}, 0x20000")
```

```python
from asmgen import *
a = Asm()
M,K,N = 2048,576,4608
a("s_cmp_ge_u32 s2, 288\ns_cbranch_scc1 L_end")
a("s_load_dwordx8 s[36:43], s[0:1], 0\ns_load_dwordx4 s[44:47], s[0:1], 32")
a("v_lshrrev_b32 v1, 6, v0\nv_and_b32 v0, 63, v0\ns_nop 0\nv_readfirstlane_b32 s3, v1")
a("v_and_b32 v2, 15, v0\nv_lshrrev_b32 v3, 4, v0")
a("s_and_b32 s4, s2, 7\ns_lshr_b32 s5, s2, 3")
a("s_lshl_b32 s5, s5, 2\ns_add_u32 s5, s5, s3\ns_lshl_b32 s5, s5, 5")
a("s_lshl_b32 s4, s4, 8")
a("s_waitcnt lgkmcnt(0)")
srd(a, 8, 36, M*K*2); srd(a, 12, 38, K*N*4); srd(a, 16, 40, 9*N*2); srd(a, 20, 42, 9*N*2); srd(a, 24, 44, K*2); srd(a, 28, 46, M*N*2)
a(f"v_mul_u32_u24 v4, {8*N*4}, v3\nv_lshl_add_u32 v4, v2, 3, v4\ns_lshl_b32 s6, s5, 2\nv_add_u32 v4, s6, v4")
a("s_lshl_b32 s6, s5, 1\nv_lshl_add_u32 v5, v2, 2, s6")
a("v_lshlrev_b32 v6, 4, v3")
a(f"v_add_u32 v7, s4, v2\nv_mul_u32_u24 v7, {K*2}, v7\nv_add_u32 v7, v7, v6")
a(f"v_add_u32 v8, s4, v2\nv_mul_u32_u24 v8, {N*2}, v8\nv_add_u32 v8, v8, v6\nv_add_u32 v8, s6, v8")
a("s_mov_b32 s34, 0x4b800000")
WB = 112
RAW = 16
for g in range(9):
    a(f"s_mov_b32 s7, {g*N*2}")
    a("buffer_load_dword v10, v5, s[16:19], s7 offen\nbuffer_load_dword v11, v5, s[20:23], s7 offen\ns_waitcnt vmcnt(0)")
    a("v_lshlrev_b32 v40, 16, v10\nv_and_b32 v41, 0xffff0000, v10\nv_lshlrev_b32 v42, 16, v11\nv_and_b32 v43, 0xffff0000, v11")
    a("v_mul_f32 v42, v42, v40\nv_mul_f32 v43, v43, v41\nv_mul_f32 v40, s34, v40\nv_mul_f32 v41, s34, v41")
    for h in range(2):
        st = 2*g+h
        for i in range(8):
            a(f"s_mov_b32 s7, {(st*32+i)*N*4}")
            a(f"buffer_load_dwordx2 v[{RAW+2*i}:{RAW+2*i+1}], v4, s[12:15], s7 offen")
        a(f"buffer_load_dwordx4 v[32:35], v6, s[24:27], 0 offen offset:{st*64}")
        a("s_waitcnt vmcnt(0)")
        for i in range(4):
            a(f"v_lshlrev_b32 v{48+2*i}, 16, v{32+i}\nv_and_b32 v{49+2*i}, 0xffff0000, v{32+i}")
        for i in range(8):
            for t in range(2):
                r = RAW+2*i+t
                a(f"v_fma_mix_f32 v{r}, v{r}, v{40+t}, -v{42+t} op_sel_hi:[1,0,0]")
                a(f"v_mul_f32 v{r}, v{r}, v{48+i}")
        for t in range(2):
            for p in range(4):
                a(f"v_cvt_pk_bf16_f32 v{WB+st*8+t*4+p}, v{RAW+4*p+t}, v{RAW+4*p+2+t}")
a("s_mov_b32 s35, 0\ns_mov_b32 s6, 0\ns_mov_b32 s7, 0")
a("L_rt:")
XB = 16
for st in range(18):
    a(f"buffer_load_dwordx4 v[{XB+4*st}:{XB+4*st+3}], v7, s[8:11], s6 offen offset:{st*64}")
for st in range(18):
    a(f"s_waitcnt vmcnt({17-st})")
    for t in range(2):
        c = "0" if st == 0 else f"v[{96+4*t}:{99+4*t}]"
        a(f"v_mfma_f32_16x16x32_bf16 v[{96+4*t}:{99+4*t}], v[{WB+st*8+t*4}:{WB+st*8+t*4+3}], v[{XB+4*st}:{XB+4*st+3}], {c}")
a("s_nop 7\ns_nop 1")
for r in range(4):
    a(f"v_cvt_pk_bf16_f32 v{104+r}, v{96+r}, v{100+r}")
a("buffer_store_dwordx4 v[104:107], v8, s[28:31], s7 offen")
a(f"s_add_u32 s6, s6, {16*K*2}\ns_add_u32 s7, s7, {16*N*2}\ns_add_u32 s35, s35, 1\ns_cmp_lt_u32 s35, 16\ns_cbranch_scc1 L_rt")
a("L_end:\ns_endpgm")
open("v0.s","w").write(kernel_file(a.text(), 288, 256, 0, 256, 256))
```
